```python
import torch

def _softmax(x, axis=-1):
    return torch.softmax(x, dim=axis)
def _gelu(x):
    return torch.nn.functional.gelu(x, approximate="tanh")
def _silu(x):
    return torch.nn.functional.silu(x)
def _sigmoid(x):
    return torch.sigmoid(x)
def _layernorm(x, axis=-1, eps=1e-5):
    m = x.mean(dim=axis, keepdim=True)
    v = x.var(dim=axis, keepdim=True, unbiased=False)
    return (x - m) / torch.sqrt(v + eps)
def _scatter_add(tgt, idx, src, axis=0):
    return tgt.clone().index_add_(axis, idx, src)
def _segment_sum(src, seg, n):
    out = torch.zeros((n,) + src.shape[1:], dtype=src.dtype)
    return out.index_add_(0, seg, src)
def _pad(x, pw):
    flat = tuple(v for pair in reversed(pw) for v in pair)
    return torch.nn.functional.pad(x, flat)

kernel_name = 'standalone__grn__sampling'

def setup_inputs():

    _w = (lambda a: (lambda t: t.to(torch.bfloat16) if t.is_floating_point() else t)(torch.as_tensor(a)))
    B, S, D = 1024, 32, 512
    return {
        "x": _w((lambda *s: torch.randn(*s, dtype=torch.bfloat16) * 0.05)(B, S, D)),
        "g": _w((lambda *s: torch.randn(*s, dtype=torch.bfloat16) * 0.4)(D) * 0.1),
        "b": _w((lambda *s: torch.randn(*s, dtype=torch.bfloat16) * 0.1)(D) * 0.1),
    }

def reference(x, g, b):
    gx = torch.sqrt((x * x).sum(axis=-2, keepdims=True))
    nx = gx / (gx.mean(axis=-1, keepdims=True) + 1e-6)
    return g * (x * nx) + b + x
```

```python
import sys, argparse

HDR = """; Kernarg layout for this problem (48 bytes, ptrs only, base s[0:1]):
; @launch grid=({grid},1,1) block=({block},1,1) lds={lds}
.amdgcn_target "amdgcn-amd-amdhsa--gfx950"
.text
.globl standalone__grn__sampling_kernel
.p2align 8
.type standalone__grn__sampling_kernel,@function
standalone__grn__sampling_kernel:
"""
FTR = """.section .rodata,"a"
.p2align 6
.amdhsa_kernel standalone__grn__sampling_kernel
  .amdhsa_next_free_vgpr {vgpr}
  .amdhsa_next_free_sgpr {sgpr}
  .amdhsa_accum_offset {accum}
  .amdhsa_group_segment_fixed_size 0
  .amdhsa_kernarg_size 48
  .amdhsa_user_sgpr_count 2
  .amdhsa_user_sgpr_kernarg_segment_ptr 1
  .amdhsa_system_sgpr_workgroup_id_x 1
  .amdhsa_float_denorm_mode_32 3
.end_amdhsa_kernel
"""

def gen(ldflag="", stflag="", lds=64, prof=False):
    L = []
    e = L.append
    X = 8
    B = 40
    ACC = 48
    T = 56
    e("    s_cmp_ge_u32 s2, 1024")
    e("    s_cbranch_scc1 L_end")
    if prof:
        e("    s_memrealtime s[20:21]")
        e("    s_load_dwordx2 s[14:15], s[0:1], %d" % (32 if prof == 2 else 40))
    e("    s_load_dwordx8 s[4:11], s[0:1], 0          ; x, g, b, out")
    e("    v_and_b32 v2, 15, v0                       ; cl")
    e("    v_lshlrev_b32 v2, 4, v2                    ; cl*16")
    e("    v_lshrrev_b32 v3, 6, v0                    ; w")
    e("    v_lshl_or_b32 v2, v3, 8, v2")
    e("    v_bfe_u32 v4, v0, 4, 2                     ; rowgrp r")
    e("    v_lshl_or_b32 v1, v4, 13, v2")
    e("    v_add_u32 v1, 0x1000, v1")
    e("    v_lshl_or_b32 v5, v4, 2, v2")
    e("    v_lshlrev_b32 v3, 2, v3")
    e("    s_lshl_b32 s3, s2, 15")
    e("    s_mov_b32 s12, 0xffff0000")
    e("    s_waitcnt lgkmcnt(0)")
    e("    s_add_u32 s4, s4, s3")
    e("    s_addc_u32 s5, s5, 0")
    e("    s_add_u32 s10, s10, s3")
    e("    s_addc_u32 s11, s11, 0")
    for i in range(8):
        e(f"    global_load_dwordx4 v[{X+4*i}:{X+4*i+3}], v1, s[4:5] offset:{i*1024-4096}{ldflag}")
    e(f"    global_load_dword v6, v5, s[6:7]")
    e(f"    global_load_dwordx4 v[{T+4}:{T+7}], v2, s[8:9]")
    for i in range(8):
        e(f"    s_waitcnt vmcnt({9-i})")
        for j in range(4):
            x = X+4*i+j
            t = T + 2*(j & 1)
            e(f"    v_lshlrev_b32 v{t}, 16, v{x}")
            e(f"    v_and_b32 v{t+1}, s12, v{x}")
            a = ACC+2*j
            if i == 0:
                e(f"    v_pk_mul_f32 v[{a}:{a+1}], v[{t}:{t+1}], v[{t}:{t+1}]")
            else:
                e(f"    v_pk_fma_f32 v[{a}:{a+1}], v[{t}:{t+1}], v[{t}:{t+1}], v[{a}:{a+1}]")
    A = ACC
    if prof: e("    s_memrealtime s[22:23]")
    e("    s_nop 1")
    for k in range(4):
        e(f"    v_permlane32_swap_b32 v{A+k}, v{A+k+4}")
    e("    s_nop 1")
    e(f"    v_pk_add_f32 v[{A}:{A+1}], v[{A}:{A+1}], v[{A+4}:{A+5}]")
    e(f"    v_pk_add_f32 v[{A+2}:{A+3}], v[{A+2}:{A+3}], v[{A+6}:{A+7}]")
    e("    s_nop 1")
    e(f"    v_permlane16_swap_b32 v{A}, v{A+2}")
    e(f"    v_permlane16_swap_b32 v{A+1}, v{A+3}")
    e("    s_nop 1")
    e(f"    v_pk_add_f32 v[{A}:{A+1}], v[{A}:{A+1}], v[{A+2}:{A+3}]")
    e(f"    v_sqrt_f32 v{A}, v{A}")
    e(f"    v_sqrt_f32 v{A+1}, v{A+1}")
    e("    s_nop 0")
    e(f"    v_add_f32 v{T}, v{A}, v{A+1}")
    e("    s_nop 1")
    e(f"    v_add_f32_dpp v{T}, v{T}, v{T} quad_perm:[1,0,3,2] row_mask:0xf bank_mask:0xf")
    e("    s_nop 1")
    e(f"    v_add_f32_dpp v{T}, v{T}, v{T} quad_perm:[2,3,0,1] row_mask:0xf bank_mask:0xf")
    e("    s_nop 1")
    e(f"    v_add_f32_dpp v{T}, v{T}, v{T} row_half_mirror row_mask:0xf bank_mask:0xf")
    e("    s_nop 1")
    e(f"    v_add_f32_dpp v{T}, v{T}, v{T} row_mirror row_mask:0xf bank_mask:0xf")
    e(f"    v_mov_b32 v{T+1}, v{T}")
    e("    s_nop 1")
    e(f"    v_permlane16_swap_b32 v{T}, v{T+1}")
    e("    s_nop 1")
    e(f"    v_add_f32 v{T}, v{T}, v{T+1}")
    e(f"    v_mov_b32 v{T+1}, v{T}")
    e("    s_nop 1")
    e(f"    v_permlane32_swap_b32 v{T}, v{T+1}")
    e("    s_nop 1")
    e(f"    v_add_f32 v{T}, v{T}, v{T+1}")
    e(f"    ds_write_b32 v3, v{T}")
    e("    s_waitcnt vmcnt(0)")
    e(f"    v_lshlrev_b32 v{T}, 16, v6")
    e(f"    v_and_b32 v{T+1}, s12, v6")
    e(f"    v_pk_mul_f32 v[{A}:{A+1}], v[{A}:{A+1}], v[{T}:{T+1}]")
    e(f"    v_mov_b64 v[{A+2}:{A+3}], v[{A}:{A+1}]")
    e("    s_waitcnt lgkmcnt(0)")
    e("    s_barrier")
    if prof: e("    s_memrealtime s[24:25]")
    e(f"    v_mov_b32 v7, 0")
    e(f"    ds_read_b128 v[{T}:{T+3}], v7")
    e(f"    v_permlane16_swap_b32 v{A}, v{A+2}")
    e(f"    v_permlane16_swap_b32 v{A+1}, v{A+3}")
    e("    s_nop 1")
    e(f"    v_mov_b64 v[{A+4}:{A+5}], v[{A}:{A+1}]")
    e(f"    v_mov_b64 v[{A+6}:{A+7}], v[{A+2}:{A+3}]")
    for j in range(4):
        e(f"    v_lshlrev_b32 v{B+2*j}, 16, v{T+4+j}")
        e(f"    v_and_b32 v{B+2*j+1}, s12, v{T+4+j}")
    for k in range(4):
        e(f"    v_permlane32_swap_b32 v{A+k}, v{A+k+4}")
    e("    s_mov_b32 s13, 0x3b000000                  ; 1/512")
    e("    v_mov_b32 v7, 0x358637bd                   ; 1e-6")
    e("    s_waitcnt lgkmcnt(0)")
    e(f"    v_pk_add_f32 v[{T}:{T+1}], v[{T}:{T+1}], v[{T+2}:{T+3}]")
    e(f"    v_add_f32 v{T}, v{T}, v{T+1}")
    e(f"    v_fma_f32 v{T}, v{T}, s13, v7")
    e(f"    v_rcp_f32 v{T}, v{T}")
    e("    s_nop 0")
    for k in range(4):
        e(f"    v_pk_fma_f32 v[{A+2*k}:{A+2*k+1}], v[{A+2*k}:{A+2*k+1}], v[{T}:{T+1}], 1.0 op_sel_hi:[1,0,0]")
    for i in range(8):
        for j in range(4):
            x = X+4*i+j
            t = T + 2*(j & 1) + 4*(i & 1)
            e(f"    v_lshlrev_b32 v{t}, 16, v{x}")
            e(f"    v_and_b32 v{t+1}, s12, v{x}")
            e(f"    v_pk_fma_f32 v[{t}:{t+1}], v[{t}:{t+1}], v[{A+2*j}:{A+2*j+1}], v[{B+2*j}:{B+2*j+1}]")
            e(f"    v_cvt_pk_bf16_f32 v{x}, v{t}, v{t+1}")
        e(f"    global_store_dwordx4 v1, v[{X+4*i}:{X+4*i+3}], s[10:11] offset:{i*1024-4096}{stflag}")
    if prof:
        e("    s_memrealtime s[26:27]")
        e("    s_waitcnt vmcnt(0)")
        e("    s_memrealtime s[28:29]")
        if prof == 3:
            e("L_spin:")
            e("    s_sleep 4")
            e("    s_memrealtime s[22:23]")
            e("    s_waitcnt lgkmcnt(0)")
            e("    s_sub_u32 s22, s22, s20")
            e("    s_cmp_lt_u32 s22, 4000")
            e("    s_cbranch_scc1 L_spin")
        elif prof == 4:
            e("    s_waitcnt lgkmcnt(0)")
            e("    s_sub_u32 s24, s28, s20")
            e("    s_lshl_b32 s24, s24, 2")
            e("    s_min_u32 s24, s24, 40000")
            e("L_spin:")
            e("    s_sleep 4")
            e("    s_memrealtime s[22:23]")
            e("    s_waitcnt lgkmcnt(0)")
            e("    s_sub_u32 s22, s22, s20")
            e("    s_cmp_lt_u32 s22, s24")
            e("    s_cbranch_scc1 L_spin")
        elif prof == 5:
            e("    s_waitcnt lgkmcnt(0)")
            e("    s_sub_u32 s24, s22, s20")
            e("    s_lshl_b32 s24, s24, 2")
            e("    s_add_u32 s24, s24, 4000")
            e("    s_min_u32 s24, s24, 40000")
            e("L_spin:")
            e("    s_sleep 4")
            e("    s_memrealtime s[22:23]")
            e("    s_waitcnt lgkmcnt(0)")
            e("    s_sub_u32 s22, s22, s20")
            e("    s_cmp_lt_u32 s22, s24")
            e("    s_cbranch_scc1 L_spin")
        elif prof == 1:
            e("    s_lshl_b32 s3, s2, 6")
            e("    s_waitcnt lgkmcnt(0)")
            e("    s_add_u32 s14, s14, s3")
            e("    s_addc_u32 s15, s15, 0")
            for k in range(10):
                e(f"    v_mov_b32 v{8+k}, s{20+k}")
            e("    v_mov_b32 v1, 0")
            e("    v_cmp_eq_u32 vcc, 0, v0")
            e("    s_and_saveexec_b64 s[30:31], vcc")
            e("    s_cbranch_execz L_end")
            e("    global_store_dwordx4 v1, v[8:11], s[14:15]")
            e("    global_store_dwordx4 v1, v[12:15], s[14:15] offset:16")
            e("    global_store_dwordx2 v1, v[16:17], s[14:15] offset:32")
        else:
            e("    s_waitcnt lgkmcnt(0)")
            for k in range(5):
                e(f"    s_not_b32 s{21+2*k}, s{20+2*k}")
            e("    v_mov_b32 v8, 0")
            for k in range(5):
                e(f"    v_writelane_b32 v8, s{21+2*k}, {2*k}")
                e(f"    v_writelane_b32 v8, s{20+2*k}, {2*k+1}")
            e("    v_lshlrev_b32 v1, 2, v0")
            e("    v_cmp_gt_u32 vcc, 10, v0")
            e("    s_and_saveexec_b64 s[30:31], vcc")
            e("    s_cbranch_execz L_end")
            e("    global_atomic_umax v1, v8, s[14:15]")
    e("L_end:")
    e("    s_endpgm")
    return HDR.format(grid=1024, block=256, lds=lds) + "\n".join(L) + "\n" + FTR.format(vgpr=64, sgpr=32, accum=64)

if __name__ == "__main__":
    ap = argparse.ArgumentParser()
    ap.add_argument("out")
    ap.add_argument("--ld", default="")
    ap.add_argument("--st", default="")
    ap.add_argument("--lds", type=int, default=64)
    ap.add_argument("--prof", type=int, default=0)
    a = ap.parse_args()
    ld = (" " + a.ld) if a.ld else ""
    st = (" " + a.st) if a.st else ""
    open(a.out, "w").write(gen(ld, st, a.lds, a.prof))
```

```python
import sys, argparse
sys.path.insert(0, "gen")
from gen_a import HDR, FTR

def wave_sum(e, T):
    e("    s_nop 1")
    e(f"    v_add_f32_dpp v{T}, v{T}, v{T} quad_perm:[1,0,3,2] row_mask:0xf bank_mask:0xf")
    e("    s_nop 1")
    e(f"    v_add_f32_dpp v{T}, v{T}, v{T} quad_perm:[2,3,0,1] row_mask:0xf bank_mask:0xf")
    e("    s_nop 1")
    e(f"    v_add_f32_dpp v{T}, v{T}, v{T} row_half_mirror row_mask:0xf bank_mask:0xf")
    e("    s_nop 1")
    e(f"    v_add_f32_dpp v{T}, v{T}, v{T} row_mirror row_mask:0xf bank_mask:0xf")
    e(f"    v_mov_b32 v{T+1}, v{T}")
    e("    s_nop 1")
    e(f"    v_permlane16_swap_b32 v{T}, v{T+1}")
    e("    s_nop 1")
    e(f"    v_add_f32 v{T}, v{T}, v{T+1}")
    e(f"    v_mov_b32 v{T+1}, v{T}")
    e("    s_nop 1")
    e(f"    v_permlane32_swap_b32 v{T}, v{T+1}")
    e("    s_nop 1")
    e(f"    v_add_f32 v{T}, v{T}, v{T+1}")

def prof_tail(e, nst):
    e("    s_memrealtime s[46:47]")
    e("    s_waitcnt vmcnt(0)")
    e("    s_memrealtime s[48:49]")
    e("    s_getreg_b32 s50, hwreg(HW_REG_XCC_ID)")
    e("    s_getreg_b32 s51, hwreg(HW_REG_HW_ID)")
    e("    s_lshl_b32 s3, s2, 6")
    e("    s_waitcnt lgkmcnt(0)")
    e("    s_add_u32 s34, s34, s3")
    e("    s_addc_u32 s35, s35, 0")
    for k in range(12):
        e(f"    v_mov_b32 v{8+k}, s{40+k}")
    e("    v_mov_b32 v1, 0")
    e("    v_cmp_eq_u32 vcc, 0, v0")
    e("    s_and_saveexec_b64 s[30:31], vcc")
    e("    s_cbranch_execz L_end")
    e("    global_store_dwordx4 v1, v[8:11], s[34:35]")
    e("    global_store_dwordx4 v1, v[12:15], s[34:35] offset:16")
    e("    global_store_dwordx4 v1, v[16:19], s[34:35] offset:32")

def gen(ldflag="", stflag="", lds=8192, prof=0, rowmap="blk", nocomp=0, layout="B", prio=0, xorb=0):
    L = []
    e = L.append
    X = 8; ACC = 40; P = 48; GR = 80; BR = 84; BF = 88; T = 96; GF = 104
    e("    s_cmp_ge_u32 s2, 1024")
    e("    s_cbranch_scc1 L_end")
    if prof:
        e("    s_memrealtime s[40:41]")
        e("    s_load_dwordx2 s[34:35], s[0:1], 40")
    e("    s_load_dwordx8 s[4:11], s[0:1], 0          ; x, g, b, out")
    if prio: e("    s_setprio 3")
    e("    v_and_b32 v2, 63, v0")
    e("    v_lshlrev_b32 v2, 4, v2                    ; lane*16")
    e("    v_lshrrev_b32 v3, 6, v0                    ; w")
    if layout == "A":
        e("    v_and_b32 v2, 15, v0")
        e("    v_lshlrev_b32 v2, 4, v2")
        e("    v_lshl_or_b32 v2, v3, 8, v2")
        e("    v_bfe_u32 v4, v0, 4, 2")
        e("    v_lshl_or_b32 v1, v4, 13, v2")
        e("    v_add_u32 v1, 0x1000, v1")
    elif rowmap == "blk":
        e("    v_lshl_or_b32 v1, v3, 13, v2               ; w*8192 + lane*16")
        e("    v_add_u32 v1, 0x1000, v1")
    else:
        e("    v_lshlrev_b32 v1, 4, v0")
        e("    v_add_u32 v1, 0x1000, v1")
    e("    v_lshl_or_b32 v3, v3, 11, v2")
    if xorb:
        e(f"    s_xor_b32 s3, s2, {xorb}")
        e("    s_lshl_b32 s3, s3, 15")
    else:
        e("    s_lshl_b32 s3, s2, 15")
    e("    s_mov_b32 s12, 0xffff0000")
    e("    s_waitcnt lgkmcnt(0)")
    e("    s_add_u32 s4, s4, s3")
    e("    s_addc_u32 s5, s5, 0")
    e("    s_add_u32 s10, s10, s3")
    e("    s_addc_u32 s11, s11, 0")
    inter = (layout == "B" and rowmap == "int")
    if inter:
        xb = [4, 14, 16, 18]; ob = [10, 20, 22, 24]
        def addr(i, bases): return bases[i//2], (i & 1)*4096 - 4096
        e(f"    global_load_dwordx4 v[{X}:{X+3}], v1, s[4:5] offset:-4096{ldflag}")
        e(f"    global_load_dwordx4 v[{X+4}:{X+7}], v1, s[4:5] offset:0{ldflag}")
        for k in range(1, 4):
            e(f"    s_add_u32 s{xb[k]}, s4, {8192*k}")
            e(f"    s_addc_u32 s{xb[k]+1}, s5, 0")
            for i in (2*k, 2*k+1):
                bs, off = addr(i, xb)
                e(f"    global_load_dwordx4 v[{X+4*i}:{X+4*i+3}], v1, s[{bs}:{bs+1}] offset:{off}{ldflag}")
        for k in range(1, 4):
            e(f"    s_add_u32 s{ob[k]}, s10, {8192*k}")
            e(f"    s_addc_u32 s{ob[k]+1}, s11, 0")
    else:
        xb = [4]*4; ob = [10]*4
        def addr(i, bases): return bases[0], i*1024 - 4096
        for i in range(8):
            e(f"    global_load_dwordx4 v[{X+4*i}:{X+4*i+3}], v1, s[4:5] offset:{i*1024-4096}{ldflag}")
    if nocomp:
        if prio: e("    s_setprio 0")
        e("    s_waitcnt vmcnt(0)")
        if prof: e("    s_memrealtime s[42:43]")
        e("    s_barrier")
        if prof: e("    s_memrealtime s[44:45]")
        for i in range(8):
            bs, off = addr(i, ob)
            e(f"    global_store_dwordx4 v1, v[{X+4*i}:{X+4*i+3}], s[{bs}:{bs+1}] offset:{off}{stflag}")
    else:
        e(f"    global_load_dwordx4 v[{GR}:{GR+3}], v2, s[6:7]")
        e(f"    global_load_dwordx4 v[{BR}:{BR+3}], v2, s[8:9]")
        if prio == 1: e("    s_setprio 0")
        for i in range(8):
            e(f"    s_waitcnt vmcnt({9-i})")
            for j in range(4):
                x = X+4*i+j
                t = T + 2*(j & 1)
                e(f"    v_lshlrev_b32 v{t}, 16, v{x}")
                e(f"    v_and_b32 v{t+1}, s12, v{x}")
                a = ACC+2*j
                if i == 0:
                    e(f"    v_pk_mul_f32 v[{a}:{a+1}], v[{t}:{t+1}], v[{t}:{t+1}]")
                else:
                    e(f"    v_pk_fma_f32 v[{a}:{a+1}], v[{t}:{t+1}], v[{t}:{t+1}], v[{a}:{a+1}]")
        if prof: e("    s_memrealtime s[42:43]")
        e(f"    ds_write_b128 v3, v[{ACC}:{ACC+3}]")
        e(f"    ds_write_b128 v3, v[{ACC+4}:{ACC+7}] offset:1024")
        e("    s_waitcnt vmcnt(0)")
        for j in range(4):
            e(f"    v_lshlrev_b32 v{BF+2*j}, 16, v{BR+j}")
            e(f"    v_and_b32 v{BF+2*j+1}, s12, v{BR+j}")
        for j in range(4):
            e(f"    v_lshlrev_b32 v{GF+2*j}, 16, v{GR+j}")
            e(f"    v_and_b32 v{GF+2*j+1}, s12, v{GR+j}")
        e("    s_waitcnt lgkmcnt(0)")
        e("    s_barrier")
        if prof: e("    s_memrealtime s[44:45]")
        for h in range(2):
            for w in range(4):
                e(f"    ds_read_b128 v[{P+8*w+4*h}:{P+8*w+4*h+3}], v2 offset:{w*2048+h*1024}")
        e("    s_mov_b32 s13, 0x3b000000                  ; 1/512")
        e("    v_mov_b32 v7, 0x358637bd                   ; 1e-6")
        for h in range(2):
            e(f"    s_waitcnt lgkmcnt({4*(1-h)})")
            for q in range(2):
                o = 4*h + 2*q
                e(f"    v_pk_add_f32 v[{P+o}:{P+o+1}], v[{P+o}:{P+o+1}], v[{P+8+o}:{P+8+o+1}]")
                e(f"    v_pk_add_f32 v[{P+16+o}:{P+16+o+1}], v[{P+16+o}:{P+16+o+1}], v[{P+24+o}:{P+24+o+1}]")
            for q in range(2):
                o = 4*h + 2*q
                e(f"    v_pk_add_f32 v[{ACC+o}:{ACC+o+1}], v[{P+o}:{P+o+1}], v[{P+16+o}:{P+16+o+1}]")
            for q in range(4):
                e(f"    v_sqrt_f32 v{ACC+4*h+q}, v{ACC+4*h+q}")
        A = ACC
        e("    s_nop 0")
        e(f"    v_pk_add_f32 v[{T}:{T+1}], v[{A}:{A+1}], v[{A+2}:{A+3}]")
        e(f"    v_pk_add_f32 v[{T+2}:{T+3}], v[{A+4}:{A+5}], v[{A+6}:{A+7}]")
        e(f"    v_pk_add_f32 v[{T}:{T+1}], v[{T}:{T+1}], v[{T+2}:{T+3}]")
        e(f"    v_add_f32 v{T}, v{T}, v{T+1}")
        for k in range(4):
            e(f"    v_pk_mul_f32 v[{A+2*k}:{A+2*k+1}], v[{A+2*k}:{A+2*k+1}], v[{GF+2*k}:{GF+2*k+1}]")
        wave_sum(e, T)
        e(f"    v_fma_f32 v{T}, v{T}, s13, v7")
        e(f"    v_rcp_f32 v{T}, v{T}")
        e("    s_nop 0")
        for k in range(4):
            e(f"    v_pk_fma_f32 v[{A+2*k}:{A+2*k+1}], v[{A+2*k}:{A+2*k+1}], v[{T}:{T+1}], 1.0 op_sel_hi:[1,0,0]")
        if prio == 2: e("    s_setprio 0")
        for i in range(8):
            for j in range(4):
                x = X+4*i+j
                t = T + 2*(j & 1) + 4*(i & 1)
                e(f"    v_lshlrev_b32 v{t}, 16, v{x}")
                e(f"    v_and_b32 v{t+1}, s12, v{x}")
                e(f"    v_pk_fma_f32 v[{t}:{t+1}], v[{t}:{t+1}], v[{A+2*j}:{A+2*j+1}], v[{BF+2*j}:{BF+2*j+1}]")
                e(f"    v_cvt_pk_bf16_f32 v{x}, v{t}, v{t+1}")
            bs, off = addr(i, ob)
            e(f"    global_store_dwordx4 v1, v[{X+4*i}:{X+4*i+3}], s[{bs}:{bs+1}] offset:{off}{stflag}")
    if prof:
        prof_tail(e, 5)
    e("L_end:")
    e("    s_endpgm")
    return HDR.format(grid=1024, block=256, lds=lds) + "\n".join(L) + "\n" + FTR.format(vgpr=112, sgpr=56, accum=112)

if __name__ == "__main__":
    ap = argparse.ArgumentParser()
    ap.add_argument("out")
    ap.add_argument("--ld", default="")
    ap.add_argument("--st", default="")
    ap.add_argument("--lds", type=int, default=8192)
    ap.add_argument("--prof", type=int, default=0)
    ap.add_argument("--rowmap", default="blk")
    ap.add_argument("--layout", default="B")
    ap.add_argument("--nocomp", type=int, default=0)
    ap.add_argument("--prio", type=int, default=0)
    ap.add_argument("--xorb", type=int, default=0)
    a = ap.parse_args()
    ld = (" " + a.ld) if a.ld else ""
    st = (" " + a.st) if a.st else ""
    open(a.out, "w").write(gen(ld, st, a.lds, a.prof, a.rowmap, a.nocomp, a.layout, a.prio, a.xorb))
```

```python
import sys, argparse
sys.path.insert(0, "gen")
from gen_a import HDR, FTR

def wave_sum(e, T):
    e("    s_nop 1")
    e(f"    v_add_f32_dpp v{T}, v{T}, v{T} quad_perm:[1,0,3,2] row_mask:0xf bank_mask:0xf")
    e("    s_nop 1")
    e(f"    v_add_f32_dpp v{T}, v{T}, v{T} quad_perm:[2,3,0,1] row_mask:0xf bank_mask:0xf")
    e("    s_nop 1")
    e(f"    v_add_f32_dpp v{T}, v{T}, v{T} row_half_mirror row_mask:0xf bank_mask:0xf")
    e("    s_nop 1")
    e(f"    v_add_f32_dpp v{T}, v{T}, v{T} row_mirror row_mask:0xf bank_mask:0xf")
    e(f"    v_mov_b32 v{T+1}, v{T}")
    e("    s_nop 1")
    e(f"    v_permlane16_swap_b32 v{T}, v{T+1}")
    e("    s_nop 1")
    e(f"    v_add_f32 v{T}, v{T}, v{T+1}")
    e(f"    v_mov_b32 v{T+1}, v{T}")
    e("    s_nop 1")
    e(f"    v_permlane32_swap_b32 v{T}, v{T+1}")
    e("    s_nop 1")
    e(f"    v_add_f32 v{T}, v{T}, v{T+1}")

def prof_tail(e, nst):
    e("    s_memrealtime s[46:47]")
    e("    s_waitcnt vmcnt(0)")
    e("    s_memrealtime s[48:49]")
    e("    s_getreg_b32 s50, hwreg(HW_REG_XCC_ID)")
    e("    s_getreg_b32 s51, hwreg(HW_REG_HW_ID)")
    e("    s_lshl_b32 s3, s2, 6")
    e("    s_waitcnt lgkmcnt(0)")
    e("    s_add_u32 s34, s34, s3")
    e("    s_addc_u32 s35, s35, 0")
    for k in range(12):
        e(f"    v_mov_b32 v{8+k}, s{40+k}")
    e("    v_mov_b32 v1, 0")
    e("    v_cmp_eq_u32 vcc, 0, v0")
    e("    s_and_saveexec_b64 s[30:31], vcc")
    e("    s_cbranch_execz L_end")
    e("    global_store_dwordx4 v1, v[8:11], s[34:35]")
    e("    global_store_dwordx4 v1, v[12:15], s[34:35] offset:16")
    e("    global_store_dwordx4 v1, v[16:19], s[34:35] offset:32")

def diag_tail(e, metric):
    e("    s_waitcnt vmcnt(0)")
    e("    s_memrealtime s[48:49]")
    e("    s_waitcnt lgkmcnt(0)")
    e("    v_mov_b32 v1, 0")
    e("    s_not_b32 s50, s40")
    e("    v_mov_b32 v8, s50")
    e("    s_cmp_ge_u32 s2, 32")
    e("    s_cbranch_scc1 L_noat")
    e("    v_cmp_eq_u32 vcc, 0, v0")
    e("    s_and_saveexec_b64 s[30:31], vcc")
    e("    s_cbranch_execz L_rest")
    e("    global_atomic_umax v1, v8, s[34:35] sc1")
    e("    s_waitcnt vmcnt(0)")
    e("L_rest:")
    e("    s_mov_b64 exec, s[30:31]")
    e("L_noat:")
    e("L_spin0:")
    e("    s_sleep 4")
    e("    s_memrealtime s[52:53]")
    e("    s_waitcnt lgkmcnt(0)")
    e("    s_sub_u32 s52, s52, s40")
    e("    s_cmp_lt_u32 s52, 3000")
    e("    s_cbranch_scc1 L_spin0")
    e("    global_load_dword v8, v1, s[34:35] sc0 sc1")
    e("    s_waitcnt vmcnt(0)")
    e("    v_readfirstlane_b32 s50, v8")
    e("    s_not_b32 s50, s50")
    src = {0: None, 1: 40, 2: 42, 3: 48}[metric]
    if src is None:
        e("    s_mov_b32 s51, 0")
    else:
        e(f"    s_sub_u32 s51, s{src}, s50")
        e("    s_max_i32 s51, s51, 0")
        e("    s_lshl_b32 s51, s51, 2")
        e("    s_min_u32 s51, s51, 20000")
    e("    s_add_u32 s51, s51, 4000")
    e("L_spin:")
    e("    s_sleep 4")
    e("    s_memrealtime s[52:53]")
    e("    s_waitcnt lgkmcnt(0)")
    e("    s_sub_u32 s53, s52, s40")
    e("    s_cmp_gt_u32 s53, 30000                    ; cap")
    e("    s_cbranch_scc1 L_end")
    e("    s_sub_u32 s52, s52, s50")
    e("    s_cmp_lt_u32 s52, s51")
    e("    s_cbranch_scc1 L_spin")

def gen(ldflag="", stflag="", lds=8192, prof=0, rowmap="blk", nocomp=0, layout="B", prio=0, xorb=0):
    L = []
    e = L.append
    X = 8; ACC = 40; P = 48; GR = 80; BR = 84; BF = 88; T = 96; GF = 104
    e("    s_cmp_ge_u32 s2, 1024")
    e("    s_cbranch_scc1 L_end")
    if prof:
        e("    s_memrealtime s[40:41]")
        e("    s_load_dwordx2 s[34:35], s[0:1], %d" % (32 if prof >= 10 else 40))
    e("    s_load_dwordx8 s[4:11], s[0:1], 0          ; x, g, b, out")
    if prio: e("    s_setprio 3")
    e("    v_and_b32 v2, 63, v0")
    e("    v_lshlrev_b32 v2, 4, v2                    ; lane*16")
    e("    v_lshrrev_b32 v3, 6, v0                    ; w")
    if layout == "A":
        e("    v_and_b32 v2, 15, v0")
        e("    v_lshlrev_b32 v2, 4, v2")
        e("    v_lshl_or_b32 v2, v3, 8, v2")
        e("    v_bfe_u32 v4, v0, 4, 2")
        e("    v_lshl_or_b32 v1, v4, 13, v2")
        e("    v_add_u32 v1, 0x1000, v1")
    elif rowmap == "blk":
        e("    v_lshl_or_b32 v1, v3, 13, v2               ; w*8192 + lane*16")
        e("    v_add_u32 v1, 0x1000, v1")
    else:
        e("    v_lshlrev_b32 v1, 4, v0")
        e("    v_add_u32 v1, 0x1000, v1")
    e("    v_lshl_or_b32 v3, v3, 11, v2")
    if xorb:
        e(f"    s_xor_b32 s3, s2, {xorb}")
        e("    s_lshl_b32 s3, s3, 15")
    else:
        e("    s_lshl_b32 s3, s2, 15")
    e("    s_mov_b32 s12, 0xffff0000")
    e("    s_waitcnt lgkmcnt(0)")
    e("    s_add_u32 s4, s4, s3")
    e("    s_addc_u32 s5, s5, 0")
    e("    s_add_u32 s10, s10, s3")
    e("    s_addc_u32 s11, s11, 0")
    inter = (layout == "B" and rowmap == "int")
    if inter:
        xb = [4, 14, 16, 18]; ob = [10, 20, 22, 24]
        def addr(i, bases): return bases[i//2], (i & 1)*4096 - 4096
        e(f"    global_load_dwordx4 v[{X}:{X+3}], v1, s[4:5] offset:-4096{ldflag}")
        e(f"    global_load_dwordx4 v[{X+4}:{X+7}], v1, s[4:5] offset:0{ldflag}")
        for k in range(1, 4):
            e(f"    s_add_u32 s{xb[k]}, s4, {8192*k}")
            e(f"    s_addc_u32 s{xb[k]+1}, s5, 0")
            for i in (2*k, 2*k+1):
                bs, off = addr(i, xb)
                e(f"    global_load_dwordx4 v[{X+4*i}:{X+4*i+3}], v1, s[{bs}:{bs+1}] offset:{off}{ldflag}")
        for k in range(1, 4):
            e(f"    s_add_u32 s{ob[k]}, s10, {8192*k}")
            e(f"    s_addc_u32 s{ob[k]+1}, s11, 0")
    else:
        xb = [4]*4; ob = [10]*4
        def addr(i, bases): return bases[0], i*1024 - 4096
        for i in range(8):
            e(f"    global_load_dwordx4 v[{X+4*i}:{X+4*i+3}], v1, s[4:5] offset:{i*1024-4096}{ldflag}")
    if nocomp:
        if prio: e("    s_setprio 0")
        e("    s_waitcnt vmcnt(0)")
        if prof: e("    s_memrealtime s[42:43]")
        e("    s_barrier")
        if prof: e("    s_memrealtime s[44:45]")
        for i in range(8):
            bs, off = addr(i, ob)
            e(f"    global_store_dwordx4 v1, v[{X+4*i}:{X+4*i+3}], s[{bs}:{bs+1}] offset:{off}{stflag}")
    else:
        e(f"    global_load_dwordx4 v[{GR}:{GR+3}], v2, s[6:7]")
        e(f"    global_load_dwordx4 v[{BR}:{BR+3}], v2, s[8:9]")
        if prio == 1: e("    s_setprio 0")
        for i in range(8):
            e(f"    s_waitcnt vmcnt({9-i})")
            for j in range(4):
                x = X+4*i+j
                t = T + 2*(j & 1)
                e(f"    v_lshlrev_b32 v{t}, 16, v{x}")
                e(f"    v_and_b32 v{t+1}, s12, v{x}")
                a = ACC+2*j
                if i == 0:
                    e(f"    v_pk_mul_f32 v[{a}:{a+1}], v[{t}:{t+1}], v[{t}:{t+1}]")
                else:
                    e(f"    v_pk_fma_f32 v[{a}:{a+1}], v[{t}:{t+1}], v[{t}:{t+1}], v[{a}:{a+1}]")
        if prof: e("    s_memrealtime s[42:43]")
        e(f"    ds_write_b128 v3, v[{ACC}:{ACC+3}]")
        e(f"    ds_write_b128 v3, v[{ACC+4}:{ACC+7}] offset:1024")
        e("    s_waitcnt vmcnt(0)")
        for j in range(4):
            e(f"    v_lshlrev_b32 v{BF+2*j}, 16, v{BR+j}")
            e(f"    v_and_b32 v{BF+2*j+1}, s12, v{BR+j}")
        for j in range(4):
            e(f"    v_lshlrev_b32 v{GF+2*j}, 16, v{GR+j}")
            e(f"    v_and_b32 v{GF+2*j+1}, s12, v{GR+j}")
        e("    s_waitcnt lgkmcnt(0)")
        e("    s_barrier")
        if prof: e("    s_memrealtime s[44:45]")
        for h in range(2):
            for w in range(4):
                e(f"    ds_read_b128 v[{P+8*w+4*h}:{P+8*w+4*h+3}], v2 offset:{w*2048+h*1024}")
        e("    s_mov_b32 s13, 0x3b000000                  ; 1/512")
        e("    v_mov_b32 v7, 0x358637bd                   ; 1e-6")
        for h in range(2):
            e(f"    s_waitcnt lgkmcnt({4*(1-h)})")
            for q in range(2):
                o = 4*h + 2*q
                e(f"    v_pk_add_f32 v[{P+o}:{P+o+1}], v[{P+o}:{P+o+1}], v[{P+8+o}:{P+8+o+1}]")
                e(f"    v_pk_add_f32 v[{P+16+o}:{P+16+o+1}], v[{P+16+o}:{P+16+o+1}], v[{P+24+o}:{P+24+o+1}]")
            for q in range(2):
                o = 4*h + 2*q
                e(f"    v_pk_add_f32 v[{ACC+o}:{ACC+o+1}], v[{P+o}:{P+o+1}], v[{P+16+o}:{P+16+o+1}]")
            for q in range(4):
                e(f"    v_sqrt_f32 v{ACC+4*h+q}, v{ACC+4*h+q}")
        A = ACC
        e("    s_nop 0")
        e(f"    v_pk_add_f32 v[{T}:{T+1}], v[{A}:{A+1}], v[{A+2}:{A+3}]")
        e(f"    v_pk_add_f32 v[{T+2}:{T+3}], v[{A+4}:{A+5}], v[{A+6}:{A+7}]")
        e(f"    v_pk_add_f32 v[{T}:{T+1}], v[{T}:{T+1}], v[{T+2}:{T+3}]")
        e(f"    v_add_f32 v{T}, v{T}, v{T+1}")
        for k in range(4):
            e(f"    v_pk_mul_f32 v[{A+2*k}:{A+2*k+1}], v[{A+2*k}:{A+2*k+1}], v[{GF+2*k}:{GF+2*k+1}]")
        wave_sum(e, T)
        e(f"    v_fma_f32 v{T}, v{T}, s13, v7")
        e(f"    v_rcp_f32 v{T}, v{T}")
        e("    s_nop 0")
        for k in range(4):
            e(f"    v_pk_fma_f32 v[{A+2*k}:{A+2*k+1}], v[{A+2*k}:{A+2*k+1}], v[{T}:{T+1}], 1.0 op_sel_hi:[1,0,0]")
        if prio == 2: e("    s_setprio 0")
        for i in range(8):
            for j in range(4):
                x = X+4*i+j
                t = T + 2*(j & 1) + 4*(i & 1)
                e(f"    v_lshlrev_b32 v{t}, 16, v{x}")
                e(f"    v_and_b32 v{t+1}, s12, v{x}")
                e(f"    v_pk_fma_f32 v[{t}:{t+1}], v[{t}:{t+1}], v[{A+2*j}:{A+2*j+1}], v[{BF+2*j}:{BF+2*j+1}]")
                e(f"    v_cvt_pk_bf16_f32 v{x}, v{t}, v{t+1}")
            bs, off = addr(i, ob)
            e(f"    global_store_dwordx4 v1, v[{X+4*i}:{X+4*i+3}], s[{bs}:{bs+1}] offset:{off}{stflag}")
    if prof >= 10:
        diag_tail(e, prof - 10)
    elif prof:
        prof_tail(e, 5)
    e("L_end:")
    e("    s_endpgm")
    return HDR.format(grid=1024, block=256, lds=lds) + "\n".join(L) + "\n" + FTR.format(vgpr=112, sgpr=56, accum=112)

if __name__ == "__main__":
    ap = argparse.ArgumentParser()
    ap.add_argument("out")
    ap.add_argument("--ld", default="")
    ap.add_argument("--st", default="")
    ap.add_argument("--lds", type=int, default=8192)
    ap.add_argument("--prof", type=int, default=0)
    ap.add_argument("--rowmap", default="blk")
    ap.add_argument("--layout", default="B")
    ap.add_argument("--nocomp", type=int, default=0)
    ap.add_argument("--prio", type=int, default=0)
    ap.add_argument("--xorb", type=int, default=0)
    a = ap.parse_args()
    ld = (" " + a.ld) if a.ld else ""
    st = (" " + a.st) if a.st else ""
    open(a.out, "w").write(gen(ld, st, a.lds, a.prof, a.rowmap, a.nocomp, a.layout, a.prio, a.xorb))
```

```python
import sys, argparse
sys.path.insert(0, "gen")
from gen_a import HDR, FTR
from gen_b import wave_sum

def prof_tail(e):
    e("    s_memrealtime s[50:51]")
    e("    s_waitcnt vmcnt(0)")
    e("    s_memrealtime s[52:53]")
    e("    s_getreg_b32 s54, hwreg(HW_REG_XCC_ID)")
    e("    s_getreg_b32 s55, hwreg(HW_REG_HW_ID)")
    e("    s_waitcnt lgkmcnt(0)")
    for k in range(16):
        e(f"    v_mov_b32 v{8+k}, s{40+k}")
    e("    v_lshlrev_b32 v1, 6, v63                     ; batch*64")
    e("    v_and_b32 v2, 63, v0")
    e("    v_cmp_eq_u32 vcc, 0, v2")
    e("    s_and_saveexec_b64 s[30:31], vcc")
    e("    s_cbranch_execz L_end")
    for k in range(4):
        e(f"    global_store_dwordx4 v1, v[{8+4*k}:{11+4*k}], s[34:35] offset:{16*k}")

def gen(a):
    L = []
    e = L.append
    ldflag = (" " + a.ld) if a.ld else ""
    stflag = (" " + a.st) if a.st else ""
    prof = a.prof
    NW = a.nw
    grid = 1024 // NW
    X = 128; ACC = 8; GR = 16; BR = 20; BF = 24; GF = 32; T = 40; OFF = 4
    e(f"    s_cmp_ge_u32 s2, {grid}")
    e("    s_cbranch_scc1 L_end")
    if prof:
        e("    s_memrealtime s[40:41]")
        e("    s_load_dwordx2 s[34:35], s[0:1], 40")
    e("    s_load_dwordx8 s[4:11], s[0:1], 0          ; x, g, b, out")
    e("    v_lshrrev_b32 v3, 6, v0                    ; w")
    if a.bmap == "lin":
        e(f"    s_mul_i32 s3, s2, {NW}")
        e("    v_add_u32 v63, s3, v3")
    else:
        e(f"    v_mul_u32_u24 v63, {grid}, v3")
        e("    v_add_u32 v63, s2, v63")
    if a.prio == 3:
        e("    v_readfirstlane_b32 s15, v3")
    elif a.prio: e("    s_setprio 3")
    e("    v_and_b32 v2, 63, v0")
    e("    v_lshlrev_b32 v2, 4, v2                    ; lane*16")
    e(f"    v_lshl_or_b32 v{OFF}, v63, 15, v2")
    e(f"    v_add_u32 v{OFF}, 0x1000, v{OFF}")
    for g in range(1, 4):
        e(f"    v_add_u32 v{OFF+g}, {8192*g}, v{OFF}")
    e("    s_mov_b32 s12, 0xffff0000")
    if a.prio == 3:
        e(f"    s_cmp_ge_u32 s15, {NW//2}")
        e("    s_cbranch_scc1 L_lo")
        e("    s_setprio 3")
        e("L_lo:")
    e("    s_waitcnt lgkmcnt(0)")
    if prof: e("    s_memrealtime s[42:43]")
    def addr(r): return OFF + r//8, (r % 8)*1024 - 4096
    gfirst = a.gfirst
    if gfirst:
        e(f"    global_load_dwordx4 v[{GR}:{GR+3}], v2, s[6:7]")
        e(f"    global_load_dwordx4 v[{BR}:{BR+3}], v2, s[8:9]")
    for r in range(32):
        o, imm = addr(r)
        e(f"    global_load_dwordx4 v[{X+4*r}:{X+4*r+3}], v{o}, s[4:5] offset:{imm}{ldflag}")
    if not gfirst:
        e(f"    global_load_dwordx4 v[{GR}:{GR+3}], v2, s[6:7]")
        e(f"    global_load_dwordx4 v[{BR}:{BR+3}], v2, s[8:9]")
    extra = 0 if gfirst else 2
    e("    s_mov_b32 s13, 0x3b000000                  ; 1/512")
    e("    v_mov_b32 v62, 0x358637bd                  ; 1e-6")
    def unpack_gb():
        for j in range(4):
            e(f"    v_lshlrev_b32 v{BF+2*j}, 16, v{BR+j}")
            e(f"    v_and_b32 v{BF+2*j+1}, s12, v{BR+j}")
        for j in range(4):
            e(f"    v_lshlrev_b32 v{GF+2*j}, 16, v{GR+j}")
            e(f"    v_and_b32 v{GF+2*j+1}, s12, v{GR+j}")
    for r in range(32):
        e(f"    s_waitcnt vmcnt({31-r+extra})")
        if prof and r == 0: e("    s_memrealtime s[44:45]")
        if gfirst and r == 0: unpack_gb()
        if a.bar >= 0 and a.prio == 3 and r == 32 - a.bar:
            e(f"    s_cmp_lt_u32 s15, {NW//2}")
            e("    s_cbranch_scc1 L_nb1")
            e("    s_barrier")
            e("L_nb1:")
        for j in range(4):
            x = X+4*r+j
            t = T + 2*j
            e(f"    v_lshlrev_b32 v{t}, 16, v{x}")
            e(f"    v_and_b32 v{t+1}, s12, v{x}")
        for j in range(4):
            t = T + 2*j
            c = ACC+2*j
            if r == 0:
                e(f"    v_pk_mul_f32 v[{c}:{c+1}], v[{t}:{t+1}], v[{t}:{t+1}]")
            else:
                e(f"    v_pk_fma_f32 v[{c}:{c+1}], v[{t}:{t+1}], v[{t}:{t+1}], v[{c}:{c+1}]")
    if prof: e("    s_memrealtime s[46:47]")
    A = ACC
    for q in range(8):
        e(f"    v_sqrt_f32 v{A+q}, v{A+q}")
    if not gfirst:
        e("    s_waitcnt vmcnt(0)")
        unpack_gb()
    else:
        e("    s_nop 0")
    e(f"    v_pk_add_f32 v[{T}:{T+1}], v[{A}:{A+1}], v[{A+2}:{A+3}]")
    e(f"    v_pk_add_f32 v[{T+2}:{T+3}], v[{A+4}:{A+5}], v[{A+6}:{A+7}]")
    e(f"    v_pk_add_f32 v[{T}:{T+1}], v[{T}:{T+1}], v[{T+2}:{T+3}]")
    e(f"    v_add_f32 v{T}, v{T}, v{T+1}")
    for k in range(4):
        e(f"    v_pk_mul_f32 v[{A+2*k}:{A+2*k+1}], v[{A+2*k}:{A+2*k+1}], v[{GF+2*k}:{GF+2*k+1}]")
    wave_sum(e, T)
    e(f"    v_fma_f32 v{T}, v{T}, s13, v62")
    e(f"    v_rcp_f32 v{T}, v{T}")
    e("    s_nop 0")
    for k in range(4):
        e(f"    v_pk_fma_f32 v[{A+2*k}:{A+2*k+1}], v[{A+2*k}:{A+2*k+1}], v[{T}:{T+1}], 1.0 op_sel_hi:[1,0,0]")
    if prof: e("    s_memrealtime s[48:49]")
    if a.prio in (2, 3): e("    s_setprio 0")
    def outrow(r):
        for j in range(4):
            x = X+4*r+j
            t = T + 2*j + 8*(r & 1)
            e(f"    v_lshlrev_b32 v{t}, 16, v{x}")
            e(f"    v_and_b32 v{t+1}, s12, v{x}")
        for j in range(4):
            t = T + 2*j + 8*(r & 1)
            e(f"    v_pk_fma_f32 v[{t}:{t+1}], v[{t}:{t+1}], v[{A+2*j}:{A+2*j+1}], v[{BF+2*j}:{BF+2*j+1}]")
        for j in range(4):
            x = X+4*r+j
            t = T + 2*j + 8*(r & 1)
            e(f"    v_cvt_pk_bf16_f32 v{x}, v{t}, v{t+1}")
    def strow(r):
        o, imm = addr(r)
        e(f"    global_store_dwordx4 v{o}, v[{X+4*r}:{X+4*r+3}], s[10:11] offset:{imm}{stflag}")
    if a.bar >= 0 and a.prio == 3:
        pre = a.pre
        for r in range(pre): outrow(r)
        e(f"    s_cmp_ge_u32 s15, {NW//2}")
        e("    s_cbranch_scc1 L_nb2")
        e("    s_barrier")
        e("L_nb2:")
        for r in range(pre): strow(r)
        for r in range(pre, 32):
            outrow(r); strow(r)
    else:
        if a.bar >= 0:
            outrow(0)
            e("    s_barrier")
            strow(0)
        else:
            outrow(0); strow(0)
        for r in range(1, 32):
            outrow(r); strow(r)
    if prof == 2:
        e("    s_waitcnt vmcnt(0) lgkmcnt(0)")
        e("L_w:")
        e("    s_sleep 4")
        e("    s_memrealtime s[56:57]")
        e("    s_waitcnt lgkmcnt(0)")
        e("    s_sub_u32 s55, s56, s40")
        e("    s_cmp_lt_i32 s55, 5000")
        e("    s_cbranch_scc1 L_w")
    elif prof:
        prof_tail(e)
    e("L_end:")
    e("    s_endpgm")
    return HDR.format(grid=grid, block=64*NW, lds=a.lds) + "\n".join(L) + "\n" + FTR.format(vgpr=a.vgpr, sgpr=64, accum=256)

if __name__ == "__main__":
    ap = argparse.ArgumentParser()
    ap.add_argument("out")
    ap.add_argument("--ld", default="")
    ap.add_argument("--st", default="sc1")
    ap.add_argument("--lds", type=int, default=0)
    ap.add_argument("--prof", type=int, default=0)
    ap.add_argument("--prio", type=int, default=2)
    ap.add_argument("--bmap", default="lin")
    ap.add_argument("--nw", type=int, default=4)
    ap.add_argument("--vgpr", type=int, default=264)
    ap.add_argument("--bar", type=int, default=-1)
    ap.add_argument("--pre", type=int, default=4)
    ap.add_argument("--gfirst", type=int, default=0)
    a = ap.parse_args()
    open(a.out, "w").write(gen(a))
```
